```python
import torch

def _softmax(x, axis=-1):
    return torch.softmax(x, dim=axis)
def _gelu(x):
    return torch.nn.functional.gelu(x, approximate="tanh")
def _silu(x):
    return torch.nn.functional.silu(x)
def _sigmoid(x):
    return torch.sigmoid(x)
def _layernorm(x, axis=-1, eps=1e-5):
    m = x.mean(dim=axis, keepdim=True)
    v = x.var(dim=axis, keepdim=True, unbiased=False)
    return (x - m) / torch.sqrt(v + eps)
def _scatter_add(tgt, idx, src, axis=0):
    return tgt.clone().index_add_(axis, idx, src)
def _segment_sum(src, seg, n):
    out = torch.zeros((n,) + src.shape[1:], dtype=src.dtype)
    return out.index_add_(0, seg, src)
def _pad(x, pw):
    flat = tuple(v for pair in reversed(pw) for v in pair)
    return torch.nn.functional.pad(x, flat)

kernel_name = 'recurrent_scan__gqa_block_cached__dense_activation_silu__decode'

def setup_inputs():

    _w = (lambda a: (lambda t: t.to(torch.bfloat16) if t.is_floating_point() else t)(torch.as_tensor(a)))
    def _A_setup():
        B, Sq, D = 2, 1, 512
        Hq, Hkv, Sk, Dh = 32, 8, 32768, 128
        assert Hq % Hkv == 0, (Hq, Hkv)
        return {
            "x": _w((lambda *s: torch.randn(*s, dtype=torch.bfloat16) * 0.4)(B, Sq, D)),
            "k_cache": _w((lambda *s: torch.randn(*s, dtype=torch.bfloat16) * 1.6)(B, Hkv, Sk, Dh)),
            "v_cache": _w((lambda *s: torch.randn(*s, dtype=torch.bfloat16) * 1.6)(B, Hkv, Sk, Dh)),
            "wq": _w((lambda *s: torch.randn(*s, dtype=torch.bfloat16) * 1.6)(D, Hq * Dh) * (D ** -0.5)),
            "wo": _w((lambda *s: torch.randn(*s, dtype=torch.bfloat16) * 1.6)(Hq * Dh, D) * ((Hq * Dh) ** -0.5)),
        }
    _A_in = _A_setup()

    def _B_setup():
        B, S, D, F = 2, 1, 512, 1792
        return {
            "x": _w((lambda *s: torch.randn(*s, dtype=torch.bfloat16) * 0.4)(B, S, D)),
            "w1": _w((lambda *s: torch.randn(*s, dtype=torch.bfloat16) * 1.6)(D, F) * (D ** -0.5)),
            "w2": _w((lambda *s: torch.randn(*s, dtype=torch.bfloat16) * 1.6)(F, D) * (F ** -0.5)),
        }
    _B_in = _B_setup()

    return {
        "A_x": _A_in["x"],
        "A_k_cache": _A_in["k_cache"],
        "A_v_cache": _A_in["v_cache"],
        "A_wq": _A_in["wq"],
        "A_wo": _A_in["wo"],
        "B_x": _B_in["x"],
        "B_w1": _B_in["w1"],
        "B_w2": _B_in["w2"],
    }

def reference(A_x, A_k_cache, A_v_cache, A_wq, A_wo, B_x, B_w1, B_w2):
    def _A_ref(x, k_cache, v_cache, wq, wo):
        B, Sq, D = x.shape
        Hq, Dh = 32, 128
        Hkv = k_cache.shape[1]
        rep = Hq // Hkv
        q = (lambda x, *d: x.permute(*d))((x @ wq).reshape(B, Sq, Hq, Dh), 0, 2, 1, 3)
        k = (lambda x, n, axis: torch.repeat_interleave(x, n, dim=axis))(k_cache, rep, axis=1)
        v = (lambda x, n, axis: torch.repeat_interleave(x, n, dim=axis))(v_cache, rep, axis=1)
        scores = torch.einsum("bhqd,bhkd->bhqk", q, k) * (Dh ** -0.5)
        p = _softmax(scores, axis=-1)
        o = torch.einsum("bhqk,bhkd->bhqd", p, v)
        return (lambda x, *d: x.permute(*d))(o, 0, 2, 1, 3).reshape(B, Sq, Hq * Dh) @ wo

    def _B_ref(x, w1, w2):
        h = torch.einsum("bsd,df->bsf", x, w1)
        h = _silu(h)
        out = torch.einsum("bsf,fd->bsd", h, w2)
        return out

    x = A_x
    xn = _layernorm(x, axis=-1)
    s = _A_ref(xn, A_k_cache, A_v_cache, A_wq, A_wo)
    g = _silu(_B_ref(xn, B_w1, B_w2))
    return x + s * g
```

```python
import sys, subprocess

def gen(name, NW=8, D=2, kperm=True, flags="nt", interleave=True, grid=256, valu=0, rmap='id', dyn=False):
    keys_per_wg = 2*8*32768 // grid
    T = keys_per_wg // 32 // NW
    region = keys_per_wg*256
    L = []
    A = L.append
    A('.amdgcn_target "amdgcn-amd-amdhsa--gfx950"')
    A('.text')
    A(f'.globl {name}')
    A('.p2align 8')
    A(f'.type {name},@function')
    A(f'{name}:')
    A(f'  s_cmp_ge_u32 s2, {grid}')
    A('  s_cbranch_scc1 L_done')
    A('  s_memrealtime s[40:41]')
    A('  s_load_dwordx4 s[4:7], s[0:1], 8')
    A('  s_load_dwordx2 s[8:9], s[0:1], 80')
    A('  s_waitcnt lgkmcnt(0)')
    if rmap=='id':
        A('  s_mov_b32 s3, s2')
    elif rmap=='transpose':
        A('  s_and_b32 s3, s2, 7')
        A(f'  s_mul_i32 s3, s3, {grid//8}')
        A('  s_lshr_b32 s10, s2, 3')
        A('  s_add_u32 s3, s3, s10')
    elif rmap=='rot3':
        A('  s_xor_b32 s3, s2, 5')
    A(f'  s_mul_i32 s10, s3, {region}')
    A(f'  s_mul_hi_u32 s11, s3, {region}')
    A('  s_add_u32 s12, s4, s10')
    A('  s_addc_u32 s13, s5, s11')
    A(f'  s_mov_b32 s14, {region}')
    A('  s_mov_b32 s15, 0x20000')
    A('  s_add_u32 s16, s6, s10')
    A('  s_addc_u32 s17, s7, s11')
    A(f'  s_mov_b32 s18, {region}')
    A('  s_mov_b32 s19, 0x20000')
    A('  v_and_b32 v1, 63, v0')
    A('  v_lshrrev_b32 v2, 6, v0')
    A('  v_lshlrev_b32 v3, 4, v1')
    if kperm:
        A('  v_lshrrev_b32 v4, 4, v1')
        A('  v_bfe_u32 v5, v1, 2, 2')
        A('  v_and_b32 v6, 3, v1')
        A('  v_lshlrev_b32 v4, 6, v4')
        A('  v_lshlrev_b32 v5, 8, v5')
        A('  v_lshlrev_b32 v6, 4, v6')
        A('  v_add3_u32 v4, v4, v5, v6')
    else:
        A('  v_mov_b32 v4, v3')
    if interleave:
        wave_stride = 8192
        tile_stride = 8192*NW
    else:
        wave_stride = 8192*T
        tile_stride = 8192
    A(f'  s_mov_b32 s20, {wave_stride}')
    A('  v_mul_lo_u32 v2, v2, s20')
    A('  v_add_u32 v4, v4, v2')
    A('  v_add_u32 v3, v3, v2')
    base = 8
    def kreg(slot,i):
        r = base + slot*64 + i*4
        return f'v[{r}:{r+3}]'
    def vreg(slot,i):
        r = base + slot*64 + 32 + i*4
        return f'v[{r}:{r+3}]'
    def issue(which, t):
        slot = t % D
        off = t*tile_stride
        A(f'  s_mov_b32 s22, {off}')
        A(f'  s_mov_b32 s23, {off+4096}')
        for i in range(8):
            so = 's22' if i<4 else 's23'
            io = (i%4)*1024
            if which=='K':
                A(f'  buffer_load_dwordx4 {kreg(slot,i)}, v4, s[12:15], {so} offen offset:{io} {flags}')
            else:
                A(f'  buffer_load_dwordx4 {vreg(slot,i)}, v3, s[16:19], {so} offen offset:{io} {flags}')
    outstanding = []
    for t in range(min(D,T)):
        issue('K',t); outstanding.append(('K',t))
        issue('V',t); outstanding.append(('V',t))
    for t in range(T):
        for which in 'KV':
            idx = outstanding.index((which,t))
            after = len(outstanding)-1-idx
            A(f'  s_waitcnt vmcnt({after*8})')
            outstanding = outstanding[idx+1:]
            for k in range(valu//2):
                r = base + (t%D)*64 + (32 if which=='V' else 0) + (k%32)
                A(f'  v_xor_b32 v7, v7, v{r}')
            if t+D < T:
                issue(which,t+D); outstanding.append((which,t+D))
    A('  s_barrier')
    A('  s_memrealtime s[42:43]')
    A('  s_waitcnt lgkmcnt(0)')
    A('  v_cmp_eq_u32 vcc, 0, v0')
    A('  s_and_saveexec_b64 s[30:31], vcc')
    A('  s_cbranch_execz L_done')
    A('  s_lshl_b32 s10, s2, 4')
    A('  s_add_u32 s10, s10, 0x10000000')
    A('  s_add_u32 s8, s8, s10')
    A('  s_addc_u32 s9, s9, 0')
    A('  v_mov_b32 v8, s40')
    A('  v_mov_b32 v9, s41')
    A('  v_mov_b32 v10, s42')
    A('  v_mov_b32 v11, s43')
    A('  v_mov_b32 v12, 0')
    A('  global_store_dwordx4 v12, v[8:11], s[8:9]')
    A('L_done:')
    A('  s_endpgm')
    nv = base + D*64
    A('.section .rodata,"a"')
    A('.p2align 6')
    A(f'.amdhsa_kernel {name}')
    A(f'  .amdhsa_next_free_vgpr {nv}')
    A('  .amdhsa_next_free_sgpr 64')
    A(f'  .amdhsa_accum_offset {(nv+3)//4*4}')
    A('  .amdhsa_group_segment_fixed_size 0')
    A('  .amdhsa_kernarg_size 88')
    A('  .amdhsa_user_sgpr_count 2')
    A('  .amdhsa_user_sgpr_kernarg_segment_ptr 1')
    A('  .amdhsa_system_sgpr_workgroup_id_x 1')
    A('.end_amdhsa_kernel')
    A('.amdgpu_metadata')
    A('---')
    A('amdhsa.version: [1, 2]')
    A('amdhsa.kernels:')
    A(f'  - .name: {name}')
    A(f'    .symbol: {name}.kd')
    A('    .kernarg_segment_size: 88')
    A('    .kernarg_segment_align: 8')
    A('    .group_segment_fixed_size: 0')
    A('    .private_segment_fixed_size: 0')
    A('    .wavefront_size: 64')
    A('    .sgpr_count: 64')
    A(f'    .vgpr_count: {nv}')
    A(f'    .max_flat_workgroup_size: {NW*64}')
    A('    .args:')
    A('      - {.name: kernargs, .size: 88, .offset: 0, .value_kind: by_value}')
    A('...')
    A('.end_amdgpu_metadata')
    open(f'{name}.s','w').write('\n'.join(L)+'\n')
    subprocess.check_call(['clang','-x','assembler','-target','amdgcn-amd-amdhsa','-mcpu=gfx950',f'{name}.s','-o',f'{name}.co'])
    return f'{name}.co:{name}:{grid}:{NW*64}:0'


if __name__=='__main__':
    specs=[]
    specs.append(gen('s_id', NW=8,D=2))
    specs.append(gen('s_tr', NW=8,D=2,rmap='transpose'))
    specs.append(gen('s_rot', NW=8,D=2,rmap='rot3'))
    print(' '.join(specs))
```

```python
import sys, subprocess
from gen_stream import *

def tail(A,name,nv,NW):
    A('.section .rodata,"a"')
    A('.p2align 6')
    A(f'.amdhsa_kernel {name}')
    A(f'  .amdhsa_next_free_vgpr {nv}')
    A('  .amdhsa_next_free_sgpr 64')
    A(f'  .amdhsa_accum_offset {(nv+3)//4*4}')
    A('  .amdhsa_group_segment_fixed_size 0')
    A('  .amdhsa_kernarg_size 88')
    A('  .amdhsa_user_sgpr_count 2')
    A('  .amdhsa_user_sgpr_kernarg_segment_ptr 1')
    A('  .amdhsa_system_sgpr_workgroup_id_x 1')
    A('.end_amdhsa_kernel')
    A('.amdgpu_metadata')
    A('---')
    A('amdhsa.version: [1, 2]')
    A('amdhsa.kernels:')
    A(f'  - .name: {name}')
    A(f'    .symbol: {name}.kd')
    A('    .kernarg_segment_size: 88')
    A('    .kernarg_segment_align: 8')
    A('    .group_segment_fixed_size: 0')
    A('    .private_segment_fixed_size: 0')
    A('    .wavefront_size: 64')
    A('    .sgpr_count: 64')
    A(f'    .vgpr_count: {nv}')
    A(f'    .max_flat_workgroup_size: {NW*64}')
    A('    .args:')
    A('      - {.name: kernargs, .size: 88, .offset: 0, .value_kind: by_value}')
    A('...')
    A('.end_amdgpu_metadata')

def gen_dyn(name, NW=8, D=2, flags='nt', KT=32, ctr_stride=256, nstatic=None):
    NL = KT//4
    grid=256
    ntiles = 32768//KT
    nw_group = 16*NW
    if nstatic is None: nstatic = D
    L=[]; A=L.append
    A('.amdgcn_target "amdgcn-amd-amdhsa--gfx950"')
    A('.text'); A(f'.globl {name}'); A('.p2align 8'); A(f'.type {name},@function'); A(f'{name}:')
    A(f'  s_cmp_ge_u32 s2, {grid}')
    A('  s_cbranch_scc1 L_done')
    A('  s_memrealtime s[40:41]')
    A('  s_load_dwordx4 s[4:7], s[0:1], 8')
    A('  s_load_dwordx4 s[8:11], s[0:1], 72')
    A('  s_waitcnt lgkmcnt(0)')
    A('  s_lshr_b32 s3, s2, 3')
    A('  s_and_b32 s3, s3, 15')
    A('  s_and_b32 s24, s2, 7')
    A('  s_lshr_b32 s25, s2, 7')
    A('  s_lshl_b32 s25, s25, 3')
    A('  s_add_u32 s24, s24, s25')
    region = 32768*256
    A(f'  s_mul_i32 s26, s3, {region}')
    A('  s_add_u32 s12, s4, s26')
    A('  s_addc_u32 s13, s5, 0')
    A(f'  s_mov_b32 s14, {region}')
    A('  s_mov_b32 s15, 0x20000')
    A('  s_add_u32 s16, s6, s26')
    A('  s_addc_u32 s17, s7, 0')
    A(f'  s_mov_b32 s18, {region}')
    A('  s_mov_b32 s19, 0x20000')
    A(f'  s_mul_i32 s26, s3, {ctr_stride}')
    A('  s_add_u32 s8, s8, s26')
    A('  s_addc_u32 s9, s9, 0')
    A('  v_and_b32 v1, 63, v0')
    A('  v_lshrrev_b32 v2, 6, v0')
    A('  v_readfirstlane_b32 s27, v2')
    A('  v_lshlrev_b32 v3, 4, v1')
    A('  v_lshrrev_b32 v4, 4, v1')
    A('  v_bfe_u32 v5, v1, 2, 2')
    A('  v_and_b32 v6, 3, v1')
    A('  v_lshlrev_b32 v4, 6, v4')
    A('  v_lshlrev_b32 v5, 8, v5')
    A('  v_lshlrev_b32 v6, 4, v6')
    A('  v_add3_u32 v4, v4, v5, v6')
    A('  v_mov_b32 v5, 0')
    A('  v_mov_b32 v6, 1')
    A(f'  s_mul_i32 s28, s24, {NW}')
    A('  s_add_u32 s28, s28, s27')
    base=8
    slot_regs = 2*NL*4
    def kreg(slot,i):
        r=base+slot*slot_regs+i*4; return f'v[{r}:{r+3}]'
    def vreg(slot,i):
        r=base+slot*slot_regs+NL*4+i*4; return f'v[{r}:{r+3}]'
    tb = KT*256
    def issue(which,slot,sreg):
        for i in range(NL):
            if i%4==0 and i>0:
                A(f'  s_add_u32 s23, {sreg}, {i*1024}')
            so = sreg if i<4 else 's23'
            io=(i%4)*1024
            if which=='K': A(f'  buffer_load_dwordx4 {kreg(slot,i)}, v4, s[12:15], {so} offen offset:{io} {flags}')
            else: A(f'  buffer_load_dwordx4 {vreg(slot,i)}, v3, s[16:19], {so} offen offset:{io} {flags}')
    def atomic():
        A('  s_mov_b64 exec, 1')
        A('  global_atomic_add v7, v5, v6, s[8:9] sc0 sc1')
        A('  s_mov_b64 exec, -1')
    atomic()
    for j in range(D):
        A(f'  s_add_u32 s{32+j}, s28, {nw_group*j}')
        A(f'  s_mul_i32 s{32+j}, s{32+j}, {tb}')
        issue('K',j,f's{32+j}')
        issue('V',j,f's{32+j}')
    A('L_loop:')
    for s in range(D):
        later = (D-1)*2*NL
        A(f'  s_waitcnt vmcnt({NL+1+later})' if D>1 else f'  s_waitcnt vmcnt({NL})')
        A(f'  s_waitcnt vmcnt({later})')
        A('  v_readfirstlane_b32 s30, v7')
        A(f'  s_add_u32 s30, s30, {nw_group*D}')
        A(f'  s_cmp_ge_u32 s30, {ntiles}')
        A(f'  s_cbranch_scc1 L_drain')
        A(f'  s_mul_i32 s{32+s}, s30, {tb}')
        atomic()
        issue('K',s,f's{32+s}')
        issue('V',s,f's{32+s}')
    A('  s_branch L_loop')
    A('L_drain:')
    A('  s_waitcnt vmcnt(0)')
    A('  s_barrier')
    A('  s_memrealtime s[42:43]')
    A('  s_waitcnt lgkmcnt(0)')
    A('  v_cmp_eq_u32 vcc, 0, v0')
    A('  s_and_saveexec_b64 s[30:31], vcc')
    A('  s_cbranch_execz L_done')
    A('  s_lshl_b32 s24, s2, 4')
    A('  s_add_u32 s24, s24, 0x10000000')
    A('  s_add_u32 s10, s10, s24')
    A('  s_addc_u32 s11, s11, 0')
    A('  v_mov_b32 v8, s40'); A('  v_mov_b32 v9, s41'); A('  v_mov_b32 v10, s42'); A('  v_mov_b32 v11, s43'); A('  v_mov_b32 v12, 0')
    A('  global_store_dwordx4 v12, v[8:11], s[10:11]')
    A('L_done:'); A('  s_endpgm')
    nv=base+D*slot_regs
    tail(A,name,nv,NW)
    open(f'{name}.s','w').write('\n'.join(L)+'\n')
    subprocess.check_call(['clang','-x','assembler','-target','amdgcn-amd-amdhsa','-mcpu=gfx950',f'{name}.s','-o',f'{name}.co'])
    return f'{name}.co:{name}:{grid}:{NW*64}:0'

if __name__=='__main__':
    specs=[]
    specs.append(gen_dyn('d_w8_d2', NW=8,D=2))
    specs.append(gen_dyn('d_w8_d1', NW=8,D=1))
    specs.append(gen_dyn('d_w8_d2_k16', NW=8,D=2,KT=16))
    specs.append(gen_dyn('d_w8_d2_s16', NW=8,D=2,ctr_stride=16))
    specs.append(gen_dyn('d_w4_d2', NW=4,D=2))
    specs.append(gen_dyn('d_w4_d3', NW=4,D=3))
    print(' '.join(specs))
```

```python
import sys, subprocess
from gen_stream import *

def tail(A,name,nv,NW):
    A('.section .rodata,"a"')
    A('.p2align 6')
    A(f'.amdhsa_kernel {name}')
    A(f'  .amdhsa_next_free_vgpr {nv}')
    A('  .amdhsa_next_free_sgpr 64')
    A(f'  .amdhsa_accum_offset {(nv+3)//4*4}')
    A('  .amdhsa_group_segment_fixed_size 0')
    A('  .amdhsa_kernarg_size 88')
    A('  .amdhsa_user_sgpr_count 2')
    A('  .amdhsa_user_sgpr_kernarg_segment_ptr 1')
    A('  .amdhsa_system_sgpr_workgroup_id_x 1')
    A('.end_amdhsa_kernel')
    A('.amdgpu_metadata')
    A('---')
    A('amdhsa.version: [1, 2]')
    A('amdhsa.kernels:')
    A(f'  - .name: {name}')
    A(f'    .symbol: {name}.kd')
    A('    .kernarg_segment_size: 88')
    A('    .kernarg_segment_align: 8')
    A('    .group_segment_fixed_size: 0')
    A('    .private_segment_fixed_size: 0')
    A('    .wavefront_size: 64')
    A('    .sgpr_count: 64')
    A(f'    .vgpr_count: {nv}')
    A(f'    .max_flat_workgroup_size: {NW*64}')
    A('    .args:')
    A('      - {.name: kernargs, .size: 88, .offset: 0, .value_kind: by_value}')
    A('...')
    A('.end_amdgpu_metadata')

def gen_dyn(name, NW=8, D=2, flags='nt', KT=32, ctr_stride=256, nstatic=None, waitall=False):
    NL = KT//4
    grid=256
    ntiles = 32768//KT
    nw_group = 16*NW
    if nstatic is None: nstatic = D
    L=[]; A=L.append
    A('.amdgcn_target "amdgcn-amd-amdhsa--gfx950"')
    A('.text'); A(f'.globl {name}'); A('.p2align 8'); A(f'.type {name},@function'); A(f'{name}:')
    A(f'  s_cmp_ge_u32 s2, {grid}')
    A('  s_cbranch_scc1 L_done')
    A('  s_memrealtime s[40:41]')
    A('  s_load_dwordx4 s[4:7], s[0:1], 8')
    A('  s_load_dwordx4 s[8:11], s[0:1], 72')
    A('  s_waitcnt lgkmcnt(0)')
    A('  s_lshr_b32 s3, s2, 3')
    A('  s_and_b32 s3, s3, 15')
    A('  s_and_b32 s24, s2, 7')
    A('  s_lshr_b32 s25, s2, 7')
    A('  s_lshl_b32 s25, s25, 3')
    A('  s_add_u32 s24, s24, s25')
    region = 32768*256
    A(f'  s_mul_i32 s26, s3, {region}')
    A('  s_add_u32 s12, s4, s26')
    A('  s_addc_u32 s13, s5, 0')
    A(f'  s_mov_b32 s14, {region}')
    A('  s_mov_b32 s15, 0x20000')
    A('  s_add_u32 s16, s6, s26')
    A('  s_addc_u32 s17, s7, 0')
    A(f'  s_mov_b32 s18, {region}')
    A('  s_mov_b32 s19, 0x20000')
    A(f'  s_mul_i32 s26, s3, {ctr_stride}')
    A('  s_add_u32 s8, s8, s26')
    A('  s_addc_u32 s9, s9, 0')
    A('  v_and_b32 v1, 63, v0')
    A('  v_lshrrev_b32 v2, 6, v0')
    A('  v_readfirstlane_b32 s27, v2')
    A('  v_lshlrev_b32 v3, 4, v1')
    A('  v_lshrrev_b32 v4, 4, v1')
    A('  v_bfe_u32 v5, v1, 2, 2')
    A('  v_and_b32 v6, 3, v1')
    A('  v_lshlrev_b32 v4, 6, v4')
    A('  v_lshlrev_b32 v5, 8, v5')
    A('  v_lshlrev_b32 v6, 4, v6')
    A('  v_add3_u32 v4, v4, v5, v6')
    A('  v_mov_b32 v5, 0')
    A('  v_mov_b32 v6, 1')
    A(f'  s_mul_i32 s28, s24, {NW}')
    A('  s_add_u32 s28, s28, s27')
    base=8
    slot_regs = 2*NL*4
    def kreg(slot,i):
        r=base+slot*slot_regs+i*4; return f'v[{r}:{r+3}]'
    def vreg(slot,i):
        r=base+slot*slot_regs+NL*4+i*4; return f'v[{r}:{r+3}]'
    tb = KT*256
    def issue(which,slot,sreg):
        for i in range(NL):
            if i%4==0 and i>0:
                A(f'  s_add_u32 s23, {sreg}, {i*1024}')
            so = sreg if i<4 else 's23'
            io=(i%4)*1024
            if which=='K': A(f'  buffer_load_dwordx4 {kreg(slot,i)}, v4, s[12:15], {so} offen offset:{io} {flags}')
            else: A(f'  buffer_load_dwordx4 {vreg(slot,i)}, v3, s[16:19], {so} offen offset:{io} {flags}')
    def atomic():
        A('  s_mov_b64 exec, 1')
        A('  global_atomic_add v7, v5, v6, s[8:9] sc0 sc1')
        A('  s_mov_b64 exec, -1')
    atomic()
    for j in range(D):
        A(f'  s_add_u32 s{32+j}, s28, {nw_group*j}')
        A(f'  s_mul_i32 s{32+j}, s{32+j}, {tb}')
        issue('K',j,f's{32+j}')
        issue('V',j,f's{32+j}')
    A('  s_memrealtime s[44:45]')
    A('  s_waitcnt vmcnt(0)') if waitall else None
    A('  s_memrealtime s[46:47]')
    A('L_loop:')
    for s in range(D):
        later = (D-1)*2*NL
        A(f'  s_waitcnt vmcnt({NL+1+later})' if D>1 else f'  s_waitcnt vmcnt({NL})')
        A(f'  s_waitcnt vmcnt({later})')
        A('  v_readfirstlane_b32 s30, v7')
        A(f'  s_add_u32 s30, s30, {nw_group*D}')
        A(f'  s_cmp_ge_u32 s30, {ntiles}')
        A(f'  s_cbranch_scc1 L_drain')
        A(f'  s_mul_i32 s{32+s}, s30, {tb}')
        atomic()
        issue('K',s,f's{32+s}')
        issue('V',s,f's{32+s}')
    A('  s_branch L_loop')
    A('L_drain:')
    A('  s_waitcnt vmcnt(0)')
    A('  s_barrier')
    A('  s_memrealtime s[42:43]')
    A('  s_waitcnt lgkmcnt(0)')
    A('  v_cmp_eq_u32 vcc, 0, v0')
    A('  s_and_saveexec_b64 s[30:31], vcc')
    A('  s_cbranch_execz L_done')
    A('  s_lshl_b32 s24, s2, 4')
    A('  s_add_u32 s24, s24, 0x10000000')
    A('  s_add_u32 s10, s10, s24')
    A('  s_addc_u32 s11, s11, 0')
    A('  v_mov_b32 v8, s40'); A('  v_mov_b32 v9, s41'); A('  v_mov_b32 v10, s42'); A('  v_mov_b32 v11, s43'); A('  v_mov_b32 v12, 0')
    A('  global_store_dwordx4 v12, v[8:11], s[10:11]')
    A('  s_lshl_b32 s24, s2, 8'); A('  s_lshl_b32 s25, s2, 4'); A('  s_sub_u32 s24, s24, s25'); A('  s_add_u32 s24, s24, 0x100000'); A('  s_add_u32 s10, s10, s24'); A('  s_addc_u32 s11, s11, 0')
    A('  v_mov_b32 v10, s44'); A('  v_mov_b32 v11, s45')
    A('  global_store_dwordx4 v12, v[8:11], s[10:11]')
    A('  s_nop 2'); A('  v_mov_b32 v8, s46'); A('  v_mov_b32 v9, s47'); A('  v_mov_b32 v10, s42'); A('  v_mov_b32 v11, s43')
    A('  global_store_dwordx4 v12, v[8:11], s[10:11] offset:16')
    A('L_done:'); A('  s_endpgm')
    nv=base+D*slot_regs
    tail(A,name,nv,NW)
    open(f'{name}.s','w').write('\n'.join(L)+'\n')
    subprocess.check_call(['clang','-x','assembler','-target','amdgcn-amd-amdhsa','-mcpu=gfx950',f'{name}.s','-o',f'{name}.co'])
    return f'{name}.co:{name}:{grid}:{NW*64}:0'


if __name__=='__main__':
    print(gen_dyn('e_w4_d2', NW=4,D=2))
    print(gen_dyn('e_w4_d2w', NW=4,D=2,waitall=True))
```
